```python
import torch

def _softmax(x, axis=-1):
    return torch.softmax(x, dim=axis)

def _gelu(x):
    return torch.nn.functional.gelu(x, approximate='tanh')

def _silu(x):
    return torch.nn.functional.silu(x)

def _sigmoid(x):
    return torch.sigmoid(x)

def _layernorm(x, axis=-1, eps=1e-05):
    m = x.mean(dim=axis, keepdim=True)
    v = x.var(dim=axis, keepdim=True, unbiased=False)
    return (x - m) / torch.sqrt(v + eps)

def _scatter_add(tgt, idx, src, axis=0):
    return tgt.clone().index_add_(axis, idx, src)

def _segment_sum(src, seg, n):
    out = torch.zeros((n,) + src.shape[1:], dtype=src.dtype)
    return out.index_add_(0, seg, src)

def _pad(x, pw):
    flat = tuple((v for pair in reversed(pw) for v in pair))
    return torch.nn.functional.pad(x, flat)
kernel_name = 'sequential_preLN__memory_aug_recurrent_mem_tr__glu_gated_geglu__prompt'

def setup_inputs():

    _w = lambda a: (lambda t: t.to(torch.bfloat16) if t.is_floating_point() else t)(torch.as_tensor(a))

    def _A_setup():
        B, S, Dm = (1, 2048, 512)
        H, Dh = (32, 128)
        M, seg = (8, 32)
        seg = min(seg, S)
        S = S // seg * seg
        return {'x': _w((lambda *s: torch.randn(*s, dtype=torch.bfloat16) * 0.05)(B, S, Dm)), 'mem0': _w((lambda *s: torch.randn(*s, dtype=torch.bfloat16) * 0.2)(B, M, Dm)), 'Wq': _w((lambda *s: torch.randn(*s, dtype=torch.bfloat16) * 1.6)(Dm, H, Dh) * Dm ** (-0.5)), 'Wk': _w((lambda *s: torch.randn(*s, dtype=torch.bfloat16) * 1.6)(Dm, H, Dh) * Dm ** (-0.5)), 'Wv': _w((lambda *s: torch.randn(*s, dtype=torch.bfloat16) * 0.2)(Dm, H, Dh) * Dm ** (-0.5)), 'Wo': _w((lambda *s: torch.randn(*s, dtype=torch.bfloat16) * 0.2)(H, Dh, Dm) * (H * Dh) ** (-0.5)), 'seg_len': seg}
    _A_in = _A_setup()

    def _B_setup():
        B, S, Dm, Df = (1, 2048, 512, 1376)
        return {'x': _w((lambda *s: torch.randn(*s, dtype=torch.bfloat16) * 0.05)(B, S, Dm)), 'w_gate': _w((lambda *s: torch.randn(*s, dtype=torch.bfloat16) * 0.4)(Dm, Df) * Dm ** (-0.5)), 'w_up': _w((lambda *s: torch.randn(*s, dtype=torch.bfloat16) * 0.4)(Dm, Df) * Dm ** (-0.5)), 'w_down': _w((lambda *s: torch.randn(*s, dtype=torch.bfloat16) * 0.4)(Df, Dm) * Df ** (-0.5))}
    _B_in = _B_setup()
    return {'A_x': _A_in['x'], 'A_mem0': _A_in['mem0'], 'A_Wq': _A_in['Wq'], 'A_Wk': _A_in['Wk'], 'A_Wv': _A_in['Wv'], 'A_Wo': _A_in['Wo'], 'A_seg_len': _A_in['seg_len'], 'B_x': _B_in['x'], 'B_w_gate': _B_in['w_gate'], 'B_w_up': _B_in['w_up'], 'B_w_down': _B_in['w_down']}

def reference(A_x, A_mem0, A_Wq, A_Wk, A_Wv, A_Wo, A_seg_len, B_x, B_w_gate, B_w_up, B_w_down):

    def _A_ref(x, mem0, Wq, Wk, Wv, Wo, seg_len):
        B, S, Dm = x.shape
        H, Dh = (Wq.shape[1], Wq.shape[2])
        M = mem0.shape[1]
        scale = Dh ** (-0.5)
        n_seg = S // seg_len
        L = M + seg_len
        idx = torch.arange(L)
        mask = (idx[:, None] < M) | (idx[:, None] >= idx[None, :])
        mem = mem0
        outs = []
        for s in range(n_seg):
            xs = x[:, s * seg_len:(s + 1) * seg_len, :].clone()
            h = torch.concatenate([mem, xs], axis=1)
            q = torch.einsum('btd,dhe->bhte', h, Wq)
            k = torch.einsum('btd,dhe->bhte', h, Wk)
            v = torch.einsum('btd,dhe->bhte', h, Wv)
            scores = torch.einsum('bhqe,bhke->bhqk', q, k) * scale
            scores = torch.where(mask[None, None], scores, -1000000000.0)
            p = _softmax(scores, axis=-1)
            o = torch.einsum('bhqk,bhke->bhqe', p, v)
            o = torch.einsum('bhte,hed->btd', o, Wo)
            mem = o[:, :M, :].clone()
            outs.append(o[:, M:, :])
        return torch.concatenate(outs, axis=1)

    def _B_ref(x, w_gate, w_up, w_down):
        g = torch.einsum('bsd,df->bsf', x, w_gate)
        u = torch.einsum('bsd,df->bsf', x, w_up)
        h = _gelu(g) * u
        return torch.einsum('bsf,fd->bsd', h, w_down)
    x = A_x
    h = x + _A_ref(_layernorm(x, axis=-1), A_mem0, A_Wq, A_Wk, A_Wv, A_Wo, A_seg_len)
    h2 = h + _B_ref(_layernorm(h, axis=-1), B_w_gate, B_w_up, B_w_down)
    return h2
```

```python
class Asm:
    def __init__(self):
        self.lines = []
        self.uid = 0
    def __call__(self, s):
        for l in s.strip("\n").split("\n"):
            self.lines.append("  " + l.strip())
    def label(self, name):
        self.lines.append(name + ":")
    def newlabel(self, base="L"):
        self.uid += 1
        return f"{base}_{self.uid}"
    def comment(self, s):
        self.lines.append("  ; " + s)
    def nop(self, n):
        while n > 0:
            k = min(n, 16)
            self(f"s_nop {k-1}")
            n -= k
    def text(self):
        return "\n".join(self.lines) + "\n"

def vr(b, n=1):
    return f"v{b}" if n == 1 else f"v[{b}:{b+n-1}]"
def ar(b, n=1):
    return f"a{b}" if n == 1 else f"a[{b}:{b+n-1}]"
def sr(b, n=1):
    return f"s{b}" if n == 1 else f"s[{b}:{b+n-1}]"

def kernel_header(name):
    return f""".globl {name}
.p2align 8
.type {name},@function
{name}:
"""
def kernel_desc(name, vgpr=512, accum=256, sgpr=102):
    return f""".amdhsa_kernel {name}
  .amdhsa_next_free_vgpr {vgpr}
  .amdhsa_next_free_sgpr {sgpr}
  .amdhsa_accum_offset {accum}
  .amdhsa_group_segment_fixed_size 0
  .amdhsa_kernarg_size 112
  .amdhsa_user_sgpr_count 2
  .amdhsa_user_sgpr_kernarg_segment_ptr 1
  .amdhsa_system_sgpr_workgroup_id_x 1
.end_amdhsa_kernel
"""
WS_XN  = 0x0000000
WS_Q   = 0x0400000
WS_K   = 0x1400000
WS_VT  = 0x2400000
WS_O   = 0x3400000
WS_KM  = 0x4400000
WS_VMT = 0x4800000
WS_H   = 0x4C00000
WS_HN  = 0x4E00000
WS_ACT = 0x5000000
WS_P1  = 0x5800000
WS_P2  = 0x5880000
WS_FLG = 0x5900000
WS_SIZE = 0x10000000
KA = dict(x=0, mem0=8, Wq=16, Wk=24, Wv=32, Wo=40, seg=48, Bx=56, wg=64, wu=72, wd=80, out=88, dbg=96, ws=104)
```

```python
from asmlib import *
from kernels import prologue, f32hex
OOB = 0x7FFFFFF0
def attn_body(a):
    Qf, KXf, KMf, VTf, VMf, S, O = 16, 48, 80, 96, 128, 160, 184
    a(f"""
    v_lshrrev_b32 v2, 4, v1          ; g
    v_and_b32 v3, 15, v1             ; i
    s_lshl_b32 s34, s20, 18          ; seg*32*8192
    s_lshl_b32 s35, s21, 8
    s_add_u32 s34, s34, s35          ; + h*256
    v_lshlrev_b32 v4, 13, v3
    v_lshl_add_u32 v4, v2, 4, v4     ; i*8192 + 16g
    s_add_u32 s35, s34, {WS_Q}
    v_add_u32 v5, s35, v4
    v_add_u32 v6, {16*8192}, v5      ; qt1
    v_lshrrev_b32 v7, 2, v3
    v_lshlrev_b32 v7, 3, v7
    v_and_b32 v8, 3, v3
    v_add_u32 v7, v7, v8
    v_lshlrev_b32 v7, 13, v7
    v_lshl_add_u32 v7, v2, 4, v7
    s_add_u32 s35, s34, {WS_K}
    v_add_u32 v7, s35, v7
    v_add_u32 v8, {4*8192}, v7       ; kt1
    ; km
    s_lshl_b32 s35, s20, 5
    s_add_u32 s35, s35, s21          ; seg*32+h
    s_lshl_b32 s36, s35, 11
    s_add_u32 s36, s36, {WS_KM}
    v_lshlrev_b32 v9, 8, v3
    v_lshl_add_u32 v9, v2, 4, v9
    v_add_u32 v9, s36, v9
    v_mov_b32 v12, {OOB}
    v_cmp_gt_u32 vcc, 8, v3
    s_nop 1
    v_cndmask_b32 v9, v12, v9, vcc
    ; vt
    s_lshl_b32 s36, s35, 13
    s_add_u32 s36, s36, {WS_VT}
    v_lshlrev_b32 v10, 6, v3
    v_lshl_add_u32 v10, v2, 4, v10
    v_add_u32 v10, s36, v10
    v_add_u32 v13, 4096, v10
    ; vmt
    s_lshl_b32 s36, s35, 11
    s_add_u32 s36, s36, {WS_VMT}
    v_lshlrev_b32 v11, 4, v3
    v_lshl_add_u32 v11, v2, 3, v11
    v_add_u32 v11, s36, v11
    v_cmp_gt_u32 vcc, 2, v2
    s_nop 1
    v_cndmask_b32 v11, v12, v11, vcc
    s_mov_b64 s[58:59], vcc
    """)
    for qt in range(2):
        for ks in range(4):
            a(f"buffer_load_dwordx4 {vr(Qf+16*qt+4*ks,4)}, v{5+qt}, s[4:7], 0 offen offset:{64*ks}")
    for kt in range(2):
        for ks in range(4):
            a(f"buffer_load_dwordx4 {vr(KXf+16*kt+4*ks,4)}, v{7+kt}, s[4:7], 0 offen offset:{64*ks}")
    for ks in range(4):
        a(f"buffer_load_dwordx4 {vr(KMf+4*ks,4)}, v9, s[4:7], 0 offen offset:{64*ks}")
    for et in range(8):
        a(f"buffer_load_dwordx4 {vr(VTf+4*et,4)}, v{10 if et<4 else 13}, s[4:7], 0 offen offset:{1024*(et%4)}")
    for et in range(8):
        a(f"buffer_load_dwordx2 {vr(VMf+4*et,2)}, v11, s[4:7], 0 offen offset:{256*et}")
        a(f"v_mov_b32 v{VMf+4*et+2}, 0")
        a(f"v_mov_b32 v{VMf+4*et+3}, 0")
    a("s_waitcnt vmcnt(16)")
    for qt in range(2):
        for ks in range(4):
            for ti, src in enumerate((KMf + 4 * ks, KXf + 4 * ks, KXf + 16 + 4 * ks)):
                acc = vr(S + 12 * qt + 4 * ti, 4)
                c = "0" if ks == 0 else acc
                a(f"v_mfma_f32_16x16x32_bf16 {acc}, {vr(src,4)}, {vr(Qf+16*qt+4*ks,4)}, {c}")
    a(f"s_mov_b32 s68, {f32hex((128 ** -0.5) * 1.4426950408889634)}")
    a(f"v_mov_b32 v14, 0xf149f2ca")
    a(f"v_lshlrev_b32 v15, 3, v2")
    a.nop(6)
    M0, M1 = 2, 3
    a("v_and_b32 v4, 15, v1")
    for qt in range(2):
        B = S + 12 * qt
        for j in range(4):
            a(f"v_cndmask_b32 v{B+j}, v14, v{B+j}, s[58:59]")
        for jj in range(8):
            a(f"v_add_u32 v5, {jj - 16*qt}, v15")
            a(f"v_cmp_le_i32 vcc, v5, v4")
            a.nop(1)
            a(f"v_cndmask_b32 v{B+4+jj}, v14, v{B+4+jj}, vcc")
        a(f"v_max3_f32 v{M0}, v{B}, v{B+1}, v{B+2}")
        for j in range(3, 11, 2):
            a(f"v_max3_f32 v{M0}, v{M0}, v{B+j}, v{B+j+1}")
        a(f"v_max_f32 v{M0}, v{M0}, v{B+11}")
        def xlane(op):
            a(f"""
            v_mov_b32 v{M1}, v{M0}
            s_nop 1
            v_permlane16_swap_b32 v{M0}, v{M1}
            {op} v{M0}, v{M0}, v{M1}
            v_mov_b32 v{M1}, v{M0}
            s_nop 1
            v_permlane32_swap_b32 v{M0}, v{M1}
            {op} v{M0}, v{M0}, v{M1}
            """)
        xlane("v_max_f32")
        a(f"v_mul_f32 v{M0}, s68, v{M0}")
        for j in range(12):
            a(f"v_fma_f32 v{B+j}, v{B+j}, s68, -v{M0}")
        for j in range(12):
            a(f"v_exp_f32 v{B+j}, v{B+j}")
        a.nop(1)
        a(f"v_add_f32 v{M0}, v{B}, v{B+1}")
        for j in range(2, 12):
            a(f"v_add_f32 v{M0}, v{M0}, v{B+j}")
        xlane("v_add_f32")
        a(f"v_rcp_f32 v{M0}, v{M0}")
        a.nop(1)
        for j in range(12):
            a(f"v_mul_f32 v{B+j}, v{B+j}, v{M0}")
        a(f"""
        v_cvt_pk_bf16_f32 v{B}, v{B}, v{B+1}
        v_cvt_pk_bf16_f32 v{B+1}, v{B+2}, v{B+3}
        v_mov_b32 v{B+2}, 0
        v_mov_b32 v{B+3}, 0
        v_cvt_pk_bf16_f32 v{B+4}, v{B+4}, v{B+5}
        v_cvt_pk_bf16_f32 v{B+5}, v{B+6}, v{B+7}
        v_cvt_pk_bf16_f32 v{B+6}, v{B+8}, v{B+9}
        v_cvt_pk_bf16_f32 v{B+7}, v{B+10}, v{B+11}
        """)
    a(f"""
    v_lshlrev_b32 v5, 13, v4
    v_add_u32 v5, v5, v15
    s_add_u32 s35, s34, {WS_O}
    v_add_u32 v5, s35, v5
    v_add_u32 v6, {16*8192}, v5
    s_waitcnt vmcnt(0)
    """)
    for qt in range(2):
        B = S + 12 * qt
        for et in range(8):
            acc = vr(Qf + 32 * qt + 4 * et, 4)
            a(f"v_mfma_f32_16x16x32_bf16 {acc}, {vr(VTf+4*et,4)}, {vr(B+4,4)}, 0")
        for et in range(8):
            acc = vr(Qf + 32 * qt + 4 * et, 4)
            a(f"v_mfma_f32_16x16x32_bf16 {acc}, {vr(VMf+4*et,4)}, {vr(B,4)}, {acc}")
    a.nop(8)
    for qt in range(2):
        for et in range(8):
            r = Qf + 32 * qt + 4 * et
            a(f"v_cvt_pk_bf16_f32 v{r}, v{r}, v{r+1}")
            a(f"v_cvt_pk_bf16_f32 v{r+1}, v{r+2}, v{r+3}")
            a(f"buffer_store_dwordx2 {vr(r,2)}, v{5+qt}, s[4:7], 0 offen offset:{32*et}")

def gen_attn(a, name):
    a.lines.append(kernel_header(name))
    prologue(a, [], 512, "L_at_end")
    a("""
    s_lshl_b32 s20, s2, 2
    s_add_u32 s20, s20, s18
    s_and_b32 s21, s20, 31
    s_lshr_b32 s20, s20, 5
    """)
    attn_body(a)
    a.label("L_at_end")
    a("s_endpgm")
```

```python
from asmlib import *
import struct
def f32hex(x):
    return "0x%08x" % struct.unpack("<I", struct.pack("<f", x))[0]

class GemmCfg:
    pass

def gemm_tile(a, MT, NT, nch, a_srd, s_aoff, lda, panels, wave_tiles, swap, S=4, vbase=2):
    BM = 64 * MT
    NP = len(panels)
    A_BYTES = BM * 128
    ST_BYTES = A_BYTES + NP * 8192
    assert ST_BYTES * S <= 163840
    tiles0, wn_add = wave_tiles
    v = vbase
    VA_G0, VA_G1 = v, v + 1
    VB_G = v + 2
    VA_R = v + 3
    VB_R = v + 11
    VT0 = v + 15
    FR = 24
    FA = [FR, FR + 4 * MT]
    FB = [FR + 8 * MT, FR + 8 * MT + 4 * NT]
    if wn_add == 64:
        wnline = f"s_lshl_b32 s34, s37, 6\n v_xor_b32 v{VT0}, s34, v{VT0}\n s_mov_b32 s34, {A_BYTES}"
    else:
        wnline = f"s_mul_i32 s34, s37, {wn_add}\n s_add_u32 s34, s34, {A_BYTES}"
    a(f"""
    s_lshr_b32 s36, s18, 1
    s_and_b32 s37, s18, 1
    ; A dma: lane i -> row = 8j + (i>>3), slot=i&7, piece = slot ^ ((4j + (i>>4))&7)
    v_lshrrev_b32 v{VT0}, 3, v1
    v_mul_lo_u32 v{VA_G0}, v{VT0}, s38
    v_and_b32 v{VT0+1}, 7, v1
    v_lshrrev_b32 v{VT0+2}, 4, v1
    v_xor_b32 v{VT0+1}, v{VT0+1}, v{VT0+2}
    v_lshl_add_u32 v{VA_G0}, v{VT0+1}, 4, v{VA_G0}
    v_xor_b32 v{VA_G1}, 64, v{VA_G0}
    """.replace("s38", "s38"))
    a(f"""
    v_lshrrev_b32 v{VT0}, 3, v1
    v_mul_lo_u32 v{VB_G}, v{VT0}, s39
    v_lshrrev_b32 v{VT0+1}, 4, v1
    v_and_b32 v{VT0+1}, 1, v{VT0+1}
    v_lshlrev_b32 v{VT0+1}, 2, v{VT0+1}
    v_and_b32 v{VT0+2}, 7, v1
    v_xor_b32 v{VT0+2}, v{VT0+2}, v{VT0+1}
    v_lshl_add_u32 v{VB_G}, v{VT0+2}, 4, v{VB_G}
    v_and_b32 v{VT0}, 31, v1
    v_lshrrev_b32 v{VT0+1}, 1, v{VT0}
    v_and_b32 v{VT0+1}, 7, v{VT0+1}
    v_lshrrev_b32 v{VT0+2}, 5, v1
    v_xor_b32 v{VT0+1}, v{VT0+1}, v{VT0+2}
    s_mul_i32 s34, s36, {32*MT*128}
    v_lshlrev_b32 v{VT0}, 7, v{VT0}
    v_add_u32 v{VT0}, s34, v{VT0}
    """)
    for ks in range(4):
        a(f"v_xor_b32 v{VT0+2}, {2*ks}, v{VT0+1}")
        a(f"v_lshl_add_u32 v{VA_R+ks}, v{VT0+2}, 4, v{VT0}")
        a(f"v_add_u32 v{VA_R+4+ks}, {2*ST_BYTES}, v{VA_R+ks}")
    a(f"""
    v_lshrrev_b32 v{VT0}, 5, v1
    v_lshlrev_b32 v{VT0}, 3, v{VT0}
    v_lshrrev_b32 v{VT0+1}, 2, v1
    v_and_b32 v{VT0+1}, 3, v{VT0+1}
    v_add_u32 v{VT0}, v{VT0}, v{VT0+1}
    v_lshlrev_b32 v{VT0}, 7, v{VT0}
    v_lshrrev_b32 v{VT0+1}, 1, v{VT0+1}
    v_lshl_add_u32 v{VT0}, v{VT0+1}, 6, v{VT0}
    v_lshrrev_b32 v{VT0+1}, 4, v1
    v_and_b32 v{VT0+1}, 1, v{VT0+1}
    v_lshl_add_u32 v{VT0}, v{VT0+1}, 5, v{VT0}
    v_and_b32 v{VT0+1}, 3, v1
    v_lshl_add_u32 v{VT0}, v{VT0+1}, 3, v{VT0}
    {wnline}
    v_add_u32 v{VB_R}, s34, v{VT0}
    v_xor_b32 v{VB_R+1}, 64, v{VB_R}
    v_add_u32 v{VB_R+2}, {2*ST_BYTES}, v{VB_R}
    v_add_u32 v{VB_R+3}, {2*ST_BYTES}, v{VB_R+1}
    """)
    nA = BM // 8
    nAw = nA // 4
    nBw = NP * 8 // 4
    per_chunk = nAw + nBw
    a(f"s_mov_b32 s40, s{s_aoff}")
    a(f"s_mul_i32 s34, s18, s38")
    a(f"s_mul_i32 s34, s34, {nAw*8}")
    a(f"s_add_u32 s40, s40, s34")
    for p, (srd, soff, ldb) in enumerate(panels):
        a(f"s_mov_b32 s{41+p}, s{soff}")
    a(f"s_mul_i32 s34, s18, s39")
    a(f"s_lshl_b32 s34, s34, 4")
    for p in range(NP):
        a(f"s_add_u32 s{41+p}, s{41+p}, s34")
    a(f"s_lshl_b32 s35, s18, {10}")
    def issue(stage):
        a(f"s_mul_i32 s34, s18, {nAw*1024}")
        a(f"s_add_u32 s34, s34, {stage*ST_BYTES}")
        for j in range(nAw):
            a(f"s_add_u32 m0, s34, {j*1024}")
            a(f"s_add_u32 s35, s40, s{48+j}")
            a(f"buffer_load_dwordx4 v{VA_G0 if j%2==0 else VA_G1}, s[{a_srd}:{a_srd+3}], s35 offen lds")
        a(f"s_add_u32 s40, s40, 128")
        a(f"s_lshl_b32 s34, s18, 11")
        a(f"s_add_u32 s34, s34, {stage*ST_BYTES + A_BYTES}")
        for p, (srd, soff, ldb) in enumerate(panels):
            for j in range(2):
                a(f"s_add_u32 m0, s34, {p*8192 + j*1024}")
                if j == 0:
                    a(f"s_nop 0")
                    a(f"buffer_load_dwordx4 v{VB_G}, s[{srd}:{srd+3}], s{41+p} offen lds")
                else:
                    a(f"s_add_u32 s35, s{41+p}, s56")
                    a(f"buffer_load_dwordx4 v{VB_G}, s[{srd}:{srd+3}], s35 offen lds")
            a(f"s_add_u32 s{41+p}, s{41+p}, s57")
    assert nAw % 2 == 0 and nAw <= 8
    for j in range(nAw):
        a(f"s_mul_i32 s{48+j}, s38, {8*j}")
    a("s_lshl_b32 s56, s39, 3")
    a("s_lshl_b32 s57, s39, 6")
    for c in range(min(S - 1, nch)):
        issue(c)
    def compute(stage, first):
        half = stage // 2
        so = (stage % 2) * ST_BYTES
        def rd(ks, buf):
            for mt in range(MT):
                a(f"ds_read_b128 {vr(FA[buf]+4*mt,4)}, v{VA_R+4*half+ks} offset:{so + mt*4096}")
            for t in range(NT):
                p, h = tiles0[t]
                off = so + p * 8192 + ks * 16 * 128
                a(f"ds_read_b64_tr_b16 {vr(FB[buf]+4*t,2)}, v{VB_R+2*half+h} offset:{off}")
                a(f"ds_read_b64_tr_b16 {vr(FB[buf]+4*t+2,2)}, v{VB_R+2*half+h} offset:{off+512}")
        nr = MT + 2 * NT
        rd(0, 0)
        for ks in range(4):
            if ks < 3:
                rd(ks + 1, (ks + 1) % 2)
                a(f"s_waitcnt lgkmcnt({nr})")
            else:
                a("s_waitcnt lgkmcnt(0)")
            b = ks % 2
            for mt in range(MT):
                for t in range(NT):
                    acc = ar((mt * NT + t) * 16, 16)
                    c = "0" if (first and ks == 0) else acc
                    A, B = vr(FA[b] + 4 * mt, 4), vr(FB[b] + 4 * t, 4)
                    if swap: A, B = B, A
                    a(f"v_mfma_f32_32x32x16_bf16 {acc}, {A}, {B}, {c}")
    def chunk(c, stage, first, inflight_after):
        a(f"s_waitcnt vmcnt({inflight_after*per_chunk})")
        a("s_barrier")
        if c + S - 1 < nch:
            issue((c + S - 1) % S)
        compute(stage, first)
    if nch <= 2 * S:
        for c in range(nch):
            chunk(c, c % S, c == 0, min(S - 2, nch - 1 - c))
    else:
        for c in range(S):
            chunk(c, c % S, c == 0, S - 2)
        nmid = (nch - S - (S - 1)) // S
        ntail_start = S + nmid * S
        if nmid > 0:
            lab = a.newlabel("L_gl")
            a(f"s_mov_b32 s58, {nmid}")
            a.label(lab)
            for c in range(S):
                a(f"s_waitcnt vmcnt({(S-2)*per_chunk})")
                a("s_barrier")
                issue((c + S - 1) % S)
                compute(c, False)
            a("s_sub_u32 s58, s58, 1")
            a("s_cmp_lg_u32 s58, 0")
            a(f"s_cbranch_scc1 {lab}")
        for c in range(ntail_start, nch):
            chunk(c, c % S, False, min(S - 2, nch - 1 - c))
    a.nop(16)
```

```python
from asmlib import *
from gemm import *

def prologue(a, ptrs, ngrid, endlabel):
    a(f"s_cmp_ge_u32 s2, {ngrid}")
    a(f"s_cbranch_scc1 {endlabel}")
    for n, s in ptrs:
        a(f"s_load_dwordx2 s[{s}:{s+1}], s[0:1], {KA[n]}")
    a(f"""
    s_load_dwordx2 s[32:33], s[0:1], {KA['ws']}
    v_and_b32 v1, 63, v0
    v_readfirstlane_b32 s18, v0
    s_lshr_b32 s18, s18, 6
    s_waitcnt lgkmcnt(0)
    s_mov_b32 s4, s32
    s_mov_b32 s5, s33
    s_mov_b32 s6, {WS_SIZE}
    s_mov_b32 s7, 0x00020000
    """)
def srd(a, d, p, size):
    a(f"""
    s_mov_b32 s{d}, s{p}
    s_mov_b32 s{d+1}, s{p+1}
    s_mov_b32 s{d+2}, {size}
    s_mov_b32 s{d+3}, 0x00020000
    """)

def ln_row_code(a, src_srd, voff, dst_off_reg, T=8):
    X = T
    F = T + 4
    S = T + 12; S2 = T + 13; U = T + 14
    a(f"buffer_load_dwordx4 {vr(X,4)}, v{voff}, s[{src_srd}:{src_srd+3}], 0 offen")
    a("s_waitcnt vmcnt(0)")
    for j in range(4):
        a(f"v_lshlrev_b32 v{F+2*j}, 16, v{X+j}")
        a(f"v_and_b32 v{F+2*j+1}, 0xffff0000, v{X+j}")
    def reduce(reg):
        a.nop(2)
        for sh in (1, 2, 4, 8):
            a(f"v_add_f32_dpp v{reg}, v{reg}, v{reg} row_ror:{sh} row_mask:0xf bank_mask:0xf")
            a.nop(2)
        for sw in ("v_permlane16_swap_b32", "v_permlane32_swap_b32"):
            a(f"v_mov_b32 v{U}, v{reg}")
            a.nop(2)
            a(f"{sw} v{reg}, v{U}")
            a(f"v_add_f32 v{reg}, v{reg}, v{U}")
    a(f"v_add_f32 v{S}, v{F}, v{F+1}")
    for j in range(2, 8):
        a(f"v_add_f32 v{S}, v{S}, v{F+j}")
    reduce(S)
    a(f"v_mul_f32 v{S}, {f32hex(1.0/512)}, v{S}")
    a(f"v_sub_f32 v{U}, v{F}, v{S}")
    a(f"v_mul_f32 v{S2}, v{U}, v{U}")
    for j in range(1, 8):
        a(f"v_sub_f32 v{U}, v{F+j}, v{S}")
        a(f"v_fmac_f32 v{S2}, v{U}, v{U}")
    reduce(S2)
    def rbf(reg):
        a(f"v_cvt_pk_bf16_f32 v{reg}, v{reg}, v{reg}")
        a(f"v_lshlrev_b32 v{reg}, 16, v{reg}")
    a(f"v_mul_f32 v{S2}, {f32hex(1.0/512)}, v{S2}")
    rbf(S2); rbf(S)
    a(f"v_add_f32 v{S2}, {f32hex(1e-5)}, v{S2}")
    rbf(S2)
    a(f"v_sqrt_f32 v{S2}, v{S2}")
    a.nop(1)
    rbf(S2)
    a(f"v_rcp_f32 v{U}, v{S2}")
    a.nop(1)
    a(f"v_fma_f32 v{X}, -v{S2}, v{U}, 2.0")
    a(f"v_mul_f32 v{U}, v{U}, v{X}")
    for j in range(8):
        a(f"v_sub_f32 v{F+j}, v{F+j}, v{S}")
        rbf(F + j)
        a(f"v_mul_f32 v{X}, v{F+j}, v{U}")
        a(f"v_fma_f32 v{X+1}, -v{X}, v{S2}, v{F+j}")
        a(f"v_fma_f32 v{F+j}, v{X+1}, v{U}, v{X}")
    for j in range(4):
        a(f"v_cvt_pk_bf16_f32 v{X+j}, v{F+2*j}, v{F+2*j+1}")
    a(f"buffer_store_dwordx4 {vr(X,4)}, v{dst_off_reg}, s[4:7], 0 offen")
    a.nop(2)

def gen_pre(a, name):
    a.lines.append(kernel_header(name))
    prologue(a, [("x", 20)], 512, "L_pre_end")
    srd(a, 8, 20, 2048 * 1024)
    a(f"""
    s_lshl_b32 s34, s2, 2
    s_add_u32 s34, s34, s18
    s_lshl_b32 s34, s34, 10
    v_lshlrev_b32 v2, 4, v1
    v_add_u32 v2, s34, v2
    v_add_u32 v3, {WS_XN}, v2
    """)
    ln_row_code(a, 8, 2, 3)
    a(f"""
    s_lshl_b32 s34, s2, 10
    v_lshlrev_b32 v2, 2, v0
    v_add_u32 v2, s34, v2
    v_add_u32 v2, {WS_P1}, v2
    v_mov_b32 v3, 1
    buffer_store_dword v3, v2, s[4:7], 0 offen
    s_cmp_gt_u32 s2, 15
    s_cbranch_scc1 L_pre_end
    v_add_u32 v2, {WS_P2 - WS_P1}, v2
    v_mov_b32 v3, 0
    buffer_store_dword v3, v2, s[4:7], 0 offen
    """)
    a.label("L_pre_end")
    a("s_endpgm")

def gen_ln2(a, name):
    a.lines.append(kernel_header(name))
    prologue(a, [], 512, "L_ln2_end")
    a(f"""
    s_lshl_b32 s34, s2, 2
    s_add_u32 s34, s34, s18
    s_lshl_b32 s34, s34, 10
    v_lshlrev_b32 v2, 4, v1
    v_add_u32 v2, s34, v2
    v_add_u32 v3, {WS_HN}, v2
    v_add_u32 v2, {WS_H}, v2
    """)
    ln_row_code(a, 4, 2, 3)
    a.label("L_ln2_end")
    a("s_endpgm")

def acc_to_bf16(a, accbase, q, dst):
    for j in range(4):
        a(f"v_accvgpr_read_b32 v{dst+j}, a{accbase+4*q+j}")
    a(f"v_cvt_pk_bf16_f32 v{dst}, v{dst}, v{dst+1}")
    a(f"v_cvt_pk_bf16_f32 v{dst+1}, v{dst+2}, v{dst+3}")

def gen_qkv(a, name):
    a.lines.append(kernel_header(name))
    prologue(a, [("Wq", 20), ("Wk", 22), ("Wv", 24)], 1536, "L_qkv_end")
    a(f"""
    s_and_b32 s26, s2, 15           ; rb
    s_lshr_b32 s27, s2, 4           ; cb
    s_lshr_b32 s28, s27, 5          ; mat
    s_and_b32 s29, s27, 31          ; head
    s_mov_b32 s38, 1024
    s_mov_b32 s39, 8192
    s_lshl_b32 s30, s26, 17         ; rb*128*1024
    s_add_u32 s30, s30, {WS_XN}
    s_lshl_b32 s31, s29, 8          ; head*256
    s_add_u32 s59, s31, 128
    s_cmp_eq_u32 s28, 1
    s_cselect_b32 s20, s22, s20
    s_cselect_b32 s21, s23, s21
    s_cmp_eq_u32 s28, 2
    s_cselect_b32 s20, s24, s20
    s_cselect_b32 s21, s25, s21
    """)
    srd(a, 8, 20, 0x400000)
    a("s_cbranch_scc1 L_qkv_v")
    MT = NT = 2
    gemm_tile(a, MT, NT, 8, 4, 30, 1024, [(8, 31, 8192), (8, 59, 8192)], ([(0, 0), (0, 1)], 8192), True)
    a(f"""
    s_mov_b32 s34, {WS_Q}
    s_cmp_eq_u32 s28, 1
    s_cselect_b32 s34, {WS_K}, s34
    s_lshl_b32 s35, s26, 20
    s_add_u32 s34, s34, s35
    s_lshl_b32 s35, s36, 19
    s_add_u32 s34, s34, s35
    s_add_u32 s34, s34, s31
    s_lshl_b32 s35, s37, 7
    s_add_u32 s34, s34, s35
    v_and_b32 v2, 31, v1
    v_lshlrev_b32 v2, 13, v2
    v_lshrrev_b32 v3, 5, v1
    v_lshl_add_u32 v2, v3, 3, v2
    v_add_u32 v2, s34, v2
    v_add_u32 v3, {32*8192}, v2
    """)
    n = 0
    for mt in range(MT):
        for t in range(NT):
            for q in range(4):
                d = 8 + 4 * (n % 8); n += 1
                acc_to_bf16(a, (mt * NT + t) * 16, q, d)
                a(f"buffer_store_dwordx2 {vr(d,2)}, v{2+mt}, s[4:7], 0 offen offset:{t*64+q*16}")
    a("s_endpgm")
    a.label("L_qkv_v")
    gemm_tile(a, MT, NT, 8, 4, 30, 1024, [(8, 31, 8192), (8, 59, 8192)], ([(0, 0), (0, 1)], 8192), False)
    a(f"""
    s_lshl_b32 s34, s26, 2
    s_lshl_b32 s35, s36, 1
    s_add_u32 s34, s34, s35
    s_lshl_b32 s34, s34, 18          ; seg*32*128*64
    s_lshl_b32 s35, s29, 13          ; h*128*64
    s_add_u32 s34, s34, s35
    s_lshl_b32 s35, s37, 12          ; wn*64*64
    s_add_u32 s34, s34, s35
    s_add_u32 s34, s34, {WS_VT}
    v_and_b32 v2, 31, v1
    v_lshlrev_b32 v2, 6, v2
    v_lshrrev_b32 v3, 5, v1
    v_lshl_add_u32 v2, v3, 3, v2
    v_add_u32 v2, s34, v2
    v_add_u32 v3, {1<<18}, v2
    """)
    n = 0
    for mt in range(MT):
        for t in range(NT):
            for q in range(4):
                d = 8 + 4 * (n % 8); n += 1
                acc_to_bf16(a, (mt * NT + t) * 16, q, d)
                a(f"buffer_store_dwordx2 {vr(d,2)}, v{2+mt}, s[4:7], 0 offen offset:{t*2048+q*16}")
    a.label("L_qkv_end")
    a("s_endpgm")

def resid_epilogue(a, MT, NT, res_srd, dst_srd, res_base, dst_base):
    a(f"""
    s_lshl_b32 s34, s26, 17
    s_lshl_b32 s35, s36, {5 + (MT.bit_length()-1) + 10}
    s_add_u32 s34, s34, s35
    s_lshl_b32 s35, s27, 7
    s_add_u32 s34, s34, s35
    s_lshl_b32 s35, s37, {6 + (NT.bit_length()-1)}
    s_add_u32 s34, s34, s35
    v_and_b32 v2, 31, v1
    v_lshlrev_b32 v2, 10, v2
    v_lshrrev_b32 v3, 5, v1
    v_lshl_add_u32 v2, v3, 3, v2
    v_add_u32 v2, s34, v2
    v_add_u32 v3, {32*1024}, v2
    v_add_u32 v4, {res_base}, v2
    v_add_u32 v5, {res_base}, v3
    v_add_u32 v6, {dst_base}, v2
    v_add_u32 v7, {dst_base}, v3
    """)
    for mt in range(MT):
        for t in range(NT):
            for q in range(4):
                a(f"buffer_load_dwordx2 {vr(24+2*((mt*NT+t)*4+q),2)}, v{4+mt}, s[{res_srd}:{res_srd+3}], 0 offen offset:{t*64+q*16}")
    n = 0
    tot = MT * NT * 4
    for mt in range(MT):
        for t in range(NT):
            for q in range(4):
                d = 8 + 4 * (n % 4); r = 24 + 2 * n; n += 1
                acc_to_bf16(a, (mt * NT + t) * 16, q, d)
                a(f"s_waitcnt vmcnt({tot - n + (n-1)})") if False else None
                a(f"s_waitcnt vmcnt({tot - n})") if n == 1 else None
                a(f"""
                v_lshlrev_b32 v{d+2}, 16, v{d}
                v_and_b32 v{d}, 0xffff0000, v{d}
                v_lshlrev_b32 v{d+3}, 16, v{r}
                v_add_f32 v{d+2}, v{d+2}, v{d+3}
                v_and_b32 v{d+3}, 0xffff0000, v{r}
                v_add_f32 v{d}, v{d}, v{d+3}
                v_cvt_pk_bf16_f32 v{d}, v{d+2}, v{d}
                v_lshlrev_b32 v{d+2}, 16, v{d+1}
                v_and_b32 v{d+1}, 0xffff0000, v{d+1}
                v_lshlrev_b32 v{d+3}, 16, v{r+1}
                v_add_f32 v{d+2}, v{d+2}, v{d+3}
                v_and_b32 v{d+3}, 0xffff0000, v{r+1}
                v_add_f32 v{d+1}, v{d+1}, v{d+3}
                v_cvt_pk_bf16_f32 v{d+1}, v{d+2}, v{d+1}
                """) if True else None
                a(f"buffer_store_dwordx2 {vr(d,2)}, v{6+mt}, s[{dst_srd}:{dst_srd+3}], 0 offen offset:{t*64+q*16}")

def gen_oproj(a, name):
    a.lines.append(kernel_header(name))
    prologue(a, [("Wo", 20), ("x", 22)], 128, "L_op_end")
    a(f"""
    s_and_b32 s26, s2, 15
    s_lshr_b32 s27, s2, 4
    s_mov_b32 s38, 8192
    s_mov_b32 s39, 1024
    s_lshl_b32 s30, s26, 20
    s_add_u32 s30, s30, {WS_O}
    s_lshl_b32 s31, s27, 7
    """)
    srd(a, 8, 20, 0x400000)
    srd(a, 12, 22, 2048 * 1024)
    gemm_tile(a, 2, 1, 64, 4, 30, 8192, [(8, 31, 1024)], ([(0, 0)], 64), True)
    a("s_waitcnt vmcnt(0)")
    resid_epilogue_w(a, 2, 1, 12, 4, 0, WS_H)
    a.label("L_op_end")
    a("s_endpgm")

def resid_epilogue_w(a, MT, NT, res_srd, dst_srd, res_base, dst_base):
    a(f"""
    s_lshl_b32 s34, s26, 17
    s_lshl_b32 s35, s36, {5 + (MT.bit_length()-1) + 10}
    s_add_u32 s34, s34, s35
    s_lshl_b32 s35, s27, 7
    s_add_u32 s34, s34, s35
    s_lshl_b32 s35, s37, {6 + (NT.bit_length()-1)}
    s_add_u32 s34, s34, s35
    v_and_b32 v2, 31, v1
    v_lshlrev_b32 v2, 10, v2
    v_lshrrev_b32 v3, 5, v1
    v_lshl_add_u32 v2, v3, 3, v2
    v_add_u32 v2, s34, v2
    v_add_u32 v3, {32*1024}, v2
    v_add_u32 v4, {res_base}, v2
    v_add_u32 v5, {res_base}, v3
    v_add_u32 v6, {dst_base}, v2
    v_add_u32 v7, {dst_base}, v3
    """)
    for mt in range(MT):
        for t in range(NT):
            for q in range(4):
                a(f"buffer_load_dwordx2 {vr(24+2*((mt*NT+t)*4+q),2)}, v{4+mt}, s[{res_srd}:{res_srd+3}], 0 offen offset:{t*64+q*16}")
    a("s_waitcnt vmcnt(0)")
    n = 0
    for mt in range(MT):
        for t in range(NT):
            for q in range(4):
                d = 8 + 4 * (n % 4); r = 24 + 2 * n; n += 1
                acc_to_bf16(a, (mt * NT + t) * 16, q, d)
                a(f"""
                v_lshlrev_b32 v{d+2}, 16, v{d}
                v_and_b32 v{d}, 0xffff0000, v{d}
                v_lshlrev_b32 v{d+3}, 16, v{r}
                v_add_f32 v{d+2}, v{d+2}, v{d+3}
                v_and_b32 v{d+3}, 0xffff0000, v{r}
                v_add_f32 v{d}, v{d}, v{d+3}
                v_cvt_pk_bf16_f32 v{d}, v{d+2}, v{d}
                v_lshlrev_b32 v{d+2}, 16, v{d+1}
                v_and_b32 v{d+1}, 0xffff0000, v{d+1}
                v_lshlrev_b32 v{d+3}, 16, v{r+1}
                v_add_f32 v{d+2}, v{d+2}, v{d+3}
                v_and_b32 v{d+3}, 0xffff0000, v{r+1}
                v_add_f32 v{d+1}, v{d+1}, v{d+3}
                v_cvt_pk_bf16_f32 v{d+1}, v{d+2}, v{d+1}
                """)
                a(f"buffer_store_dwordx2 {vr(d,2)}, v{6+mt}, s[{dst_srd}:{dst_srd+3}], 0 offen offset:{t*64+q*16}")

ACT_LD = 1408 * 2
def gen_gateup(a, name):
    a.lines.append(kernel_header(name))
    prologue(a, [("wg", 20), ("wu", 22)], 352, "L_gu_end")
    a(f"""
    s_and_b32 s26, s2, 15
    s_lshr_b32 s27, s2, 4
    s_mov_b32 s38, 1024
    s_mov_b32 s39, 2752
    s_lshl_b32 s30, s26, 17
    s_add_u32 s30, s30, {WS_HN}
    s_lshl_b32 s31, s27, 7
    """)
    srd(a, 8, 20, 512 * 2752)
    srd(a, 12, 22, 512 * 2752)
    gemm_tile(a, 2, 2, 8, 4, 30, 1024, [(8, 31, 2752), (12, 31, 2752)], ([(0, 0), (1, 0)], 64), True)
    a(f"""
    s_mul_i32 s34, s26, {128*ACT_LD}
    s_mul_i32 s35, s36, {64*ACT_LD}
    s_add_u32 s34, s34, s35
    s_lshl_b32 s35, s27, 7
    s_add_u32 s34, s34, s35
    s_lshl_b32 s35, s37, 6
    s_add_u32 s34, s34, s35
    s_add_u32 s34, s34, {WS_ACT}
    v_and_b32 v2, 31, v1
    v_mul_u32_u24 v2, {ACT_LD}, v2
    v_lshrrev_b32 v3, 5, v1
    v_lshl_add_u32 v2, v3, 3, v2
    v_add_u32 v2, s34, v2
    v_add_u32 v3, {32*ACT_LD}, v2
    s_lshl_b32 s34, s27, 6
    s_lshl_b32 s35, s37, 5
    s_add_u32 s34, s34, s35
    s_cmp_ge_u32 s34, 1376
    s_cselect_b32 s60, 0, 1.0
    s_mov_b32 s61, {f32hex(0.044715)}
    s_mov_b32 s62, {f32hex(2*0.7978845608028654*1.4426950408889634)}
    """)
    def rbf(reg):
        a(f"v_cvt_pk_bf16_f32 v{reg}, v{reg}, v{reg}")
        a(f"v_lshlrev_b32 v{reg}, 16, v{reg}")
    n = 0
    for mt in range(2):
        for q in range(4):
            d = 8 + 12 * (n % 2); n += 1
            for j in range(4):
                g, u, t = d + j, d + 4 + j, d + 8 + j
                a(f"v_accvgpr_read_b32 v{g}, a{(mt*2+0)*16+4*q+j}")
                a(f"v_accvgpr_read_b32 v{u}, a{(mt*2+1)*16+4*q+j}")
                rbf(g); rbf(u)
                a(f"""
                v_mul_f32 v{t}, v{g}, v{g}
                v_mul_f32 v{t}, v{t}, v{g}
                v_fma_f32 v{t}, v{t}, s61, v{g}
                v_mul_f32 v{t}, s62, v{t}
                v_exp_f32 v{t}, -v{t}
                s_nop 0
                v_add_f32 v{t}, 1.0, v{t}
                v_rcp_f32 v{t}, v{t}
                s_nop 0
                v_mul_f32 v{g}, v{g}, v{t}
                """)
                rbf(g)
                a(f"v_mul_f32 v{g}, v{g}, v{u}")
                a(f"v_mul_f32 v{g}, s60, v{g}")
            a(f"v_cvt_pk_bf16_f32 v{d}, v{d}, v{d+1}")
            a(f"v_cvt_pk_bf16_f32 v{d+1}, v{d+2}, v{d+3}")
            a(f"buffer_store_dwordx2 {vr(d,2)}, v{2+mt}, s[4:7], 0 offen offset:{q*16}")
    a.label("L_gu_end")
    a("s_endpgm")

def gen_down(a, name):
    a.lines.append(kernel_header(name))
    prologue(a, [("wd", 20), ("out", 22)], 128, "L_dn_end")
    a(f"""
    s_and_b32 s26, s2, 15
    s_lshr_b32 s27, s2, 4
    s_mov_b32 s38, {ACT_LD}
    s_mov_b32 s39, 1024
    s_mul_i32 s30, s26, {128*ACT_LD}
    s_add_u32 s30, s30, {WS_ACT}
    s_lshl_b32 s31, s27, 7
    """)
    srd(a, 8, 20, 1376 * 1024)
    srd(a, 12, 22, 2048 * 1024)
    gemm_tile(a, 2, 1, 22, 4, 30, ACT_LD, [(8, 31, 1024)], ([(0, 0)], 64), True)
    a("s_waitcnt vmcnt(0)")
    resid_epilogue_w(a, 2, 1, 4, 12, WS_H, 0)
    a.label("L_dn_end")
    a("s_endpgm")
```

```python
from asmlib import *
import struct

def f32hex(x):
    return "0x%08x" % struct.unpack("<I", struct.pack("<f", x))[0]

WOB = 0
MEMB = 135168
SB = MEMB + 9 * 1040
OB = SB + 12288
ROLE = OB + 4096
OOB = 0x7FFFFFF0

V_P2R, V_MEMW, V_MEMR, V_KX0, V_KX1, V_VT, V_KM, V_VM = 2, 3, 4, 5, 6, 7, 8, 9
V_SR1, V_SR2, V_SR3, V_SW, V_OW, V_OR, V_WO0, V_WO1 = 10, 11, 12, 13, 14, 15, 16, 17
V_P1W, V_P1R, V_P2W, V_TAG1, V_TAG2E, V_TAG2W = 18, 19, 20, 21, 22, 23
PD = 24
RING = 40
QACC, KACC, VACC, KX, VT, ST, TMP = 72, 80, 88, 96, 104, 112, 124

def wfrag(mat, tile, ks):
    f = (mat * 2 + tile) * 16 + ks
    if f < 64:
        return ar(f * 4, 4), ("a", f * 4)
    return vr(128 + (f - 64) * 4, 4), ("v", 128 + (f - 64) * 4)

def role_select(a, nwg):
    a(f"""
    s_cmp_lg_u32 s18, 0
    s_cbranch_scc1 L_rec_rolewait
    s_getreg_b32 s63, hwreg(HW_REG_XCC_ID)
    s_and_b32 s63, s63, 7
    s_mov_b64 exec, 1
    s_lshl_b32 s34, s63, 2
    v_mov_b32 v2, 1
    v_mov_b32 v3, 1
    v_mov_b32 v4, s34
    v_mov_b32 v5, 32
    buffer_atomic_add v2, v4, s[8:11], 0 offen sc0 sc1
    buffer_atomic_add v3, v5, s[8:11], 0 offen sc0 sc1
    s_waitcnt vmcnt(0)
    v_readfirstlane_b32 s64, v2
    v_readfirstlane_b32 s65, v3
    v_mov_b32 v5, 36
    s_cmp_eq_u32 s64, 31
    s_cbranch_scc0 L_rec_nodecide
    s_add_u32 s34, s63, 1
    v_mov_b32 v6, s34
    v_mov_b32 v7, 0
    buffer_atomic_cmpswap v[6:7], v5, s[8:11], 0 offen sc0 sc1
    s_waitcnt vmcnt(0)
    """)
    a.label("L_rec_nodecide")
    a("s_mov_b32 s62, 0")
    a.label("L_rec_pollrole")
    a(f"""
    buffer_load_dword v6, v5, s[8:11], 0 offen sc1
    s_waitcnt vmcnt(0)
    v_readfirstlane_b32 s66, v6
    s_cmp_lg_u32 s66, 0
    s_cbranch_scc1 L_rec_decided
    s_add_u32 s62, s62, 1
    s_cmp_lt_u32 s62, 400
    s_cbranch_scc1 L_rec_pollrole
    v_mov_b32 v6, 0x100
    v_mov_b32 v7, 0
    buffer_atomic_cmpswap v[6:7], v5, s[8:11], 0 offen sc0 sc1
    s_waitcnt vmcnt(0)
    s_mov_b32 s62, 0
    s_branch L_rec_pollrole
    """)
    a.label("L_rec_decided")
    a(f"""
    s_mov_b32 s16, -1
    s_mov_b32 s17, 0
    s_add_u32 s34, s63, 1
    s_cmp_eq_u32 s66, s34
    s_cbranch_scc0 L_rec_notfast
    s_cmp_lt_u32 s64, 32
    s_cbranch_scc0 L_rec_rolewr
    s_mov_b32 s16, s64
    s_branch L_rec_rolewr
    """)
    a.label("L_rec_notfast")
    a(f"""
    s_cmp_eq_u32 s66, 0x100
    s_cbranch_scc0 L_rec_rolewr
    s_cmp_lt_u32 s65, 32
    s_cbranch_scc0 L_rec_rolewr
    s_mov_b32 s16, s65
    s_mov_b32 s17, 1
    """)
    a.label("L_rec_rolewr")
    a(f"""
    v_mov_b32 v2, s16
    v_mov_b32 v3, s17
    v_mov_b32 v4, {ROLE}
    ds_write_b64 v4, v[2:3]
    s_waitcnt lgkmcnt(0)
    s_mov_b64 exec, -1
    """)
    a.label("L_rec_rolewait")
    a(f"""
    s_barrier
    v_mov_b32 v4, {ROLE}
    ds_read_b64 v[2:3], v4
    s_waitcnt lgkmcnt(0)
    v_readfirstlane_b32 s16, v2
    v_readfirstlane_b32 s17, v3
    s_barrier
    """)

def stores_modal(a, lines):
    l1 = a.newlabel("L_st"); l2 = a.newlabel("L_st")
    a("s_cmp_lg_u32 s17, 0")
    a(f"s_cbranch_scc1 {l1}")
    for l in lines: a(l)
    a(f"s_branch {l2}")
    a.label(l1)
    for l in lines: a(l + " sc1")
    a.label(l2)

def rec_setup(a):
    a(f"""
    v_lshrrev_b32 v30, 4, v1
    v_and_b32 v31, 15, v1
    s_lshl_b32 s34, s18, 7              ; 128w
    v_add_u32 v32, s34, v30             ; row
    v_lshlrev_b32 v33, 13, v32          ; row*8192
    s_lshl_b32 s35, s16, 8              ; h*256
    v_lshl_add_u32 v33, v31, 4, v33
    v_add_u32 v33, s35, v33
    v_mul_u32_u24 v34, 272, v32
    v_lshl_add_u32 v34, v31, 4, v34
    v_lshrrev_b32 v35, 2, v1
    v_and_b32 v35, 3, v35               ; r
    v_lshl_add_u32 v35, v30, 3, v35     ; 8gg + r
    v_mul_u32_u24 v35, 272, v35
    v_and_b32 v36, 3, v1                ; c
    s_lshl_b32 s34, s18, 6              ; 32w*2
    v_add_u32 v35, s34, v35
    v_lshl_add_u32 v37, v36, 4, v35     ; qk: + 8c*2
    v_add_u32 v38, {8*8704}, v37
    v_lshl_add_u32 v39, v36, 3, v35     ; v: + 4c*2
    v_add_u32 v29, {8*8704}, v39
    """)
    for mat in range(3):
        a(f"""
        s_mov_b32 s12, s{22+2*mat}
        s_mov_b32 s13, s{23+2*mat}
        s_mov_b32 s14, 0x400000
        s_mov_b32 s15, 0x00020000
        """)
        for b in range(4):
            for j in range(8):
                i = b * 8 + j
                a(f"s_mov_b32 s34, {i*32768}")
                a(f"buffer_load_dwordx4 {vr(RING+4*j,4)}, v33, s[12:15], s34 offen")
            for j in range(8):
                i = b * 8 + j
                a(f"s_waitcnt vmcnt({7-j})")
                a(f"ds_write_b128 v34, {vr(RING+4*j,4)} offset:{i*1088}")
        a("s_waitcnt lgkmcnt(0)")
        a("s_barrier")
        for tile in range(2):
            for ks in range(16):
                _, (k, base) = wfrag(mat, tile, ks)
                if mat < 2:
                    addr = "v37" if ks < 8 else "v38"; toff = 8 * tile
                else:
                    addr = "v39" if ks < 8 else "v29"; toff = 32 * tile
                off = (ks % 8) * 8704 + toff
                R = ar if k == "a" else vr
                a(f"ds_read_b64_tr_b16 {R(base,2)}, {addr} offset:{off}")
                a(f"ds_read_b64_tr_b16 {R(base+2,2)}, {addr} offset:{off+1088}")
                if ks % 4 == 3:
                    a("s_waitcnt lgkmcnt(0)")
        a("s_waitcnt lgkmcnt(0)")
        a("s_barrier")
    a(f"""
    s_mov_b32 s12, s28
    s_mov_b32 s13, s29
    s_mov_b32 s14, 0x400000
    s_mov_b32 s15, 0x00020000
    s_lshl_b32 s34, s16, 17
    s_lshl_b32 s35, s18, 15
    s_add_u32 s34, s34, s35
    v_lshlrev_b32 v33, 4, v1
    v_add_u32 v33, s34, v33            ; h*131072 + 32w*1024 + l*16
    s_mul_i32 s35, s18, {32*1056}
    v_lshlrev_b32 v34, 4, v1
    v_add_u32 v34, s35, v34
    """)
    for b in range(4):
        for j in range(8):
            i = b * 8 + j
            a(f"s_mov_b32 s34, {i*1024}")
            a(f"buffer_load_dwordx4 {vr(RING+4*j,4)}, v33, s[12:15], s34 offen")
        for j in range(8):
            i = b * 8 + j
            a(f"s_waitcnt vmcnt({7-j})")
            a(f"ds_write_b128 v34, {vr(RING+4*j,4)} offset:{i*1056}")
    a(f"""
    s_mov_b32 s12, s20
    s_mov_b32 s13, s21
    s_mov_b32 s14, 8192
    s_mov_b32 s15, 0x00020000
    s_lshl_b32 s34, s18, 11
    v_lshlrev_b32 v33, 4, v1
    v_add_u32 v33, s34, v33
    buffer_load_dwordx4 v[40:43], v33, s[12:15], 0 offen
    buffer_load_dwordx4 v[44:47], v33, s[12:15], 0 offen offset:1024
    s_mul_i32 s35, s18, 2080
    s_add_u32 s35, s35, {MEMB}
    v_lshlrev_b32 v34, 4, v1
    v_add_u32 v34, s35, v34
    v_mov_b32 v48, 0
    v_mov_b32 v49, 0
    v_mov_b32 v50, 0
    v_mov_b32 v51, 0
    v_lshlrev_b32 v35, 4, v1
    v_add_u32 v35, {MEMB + 8*1040}, v35
    ds_write_b128 v35, v[48:51]
    s_waitcnt vmcnt(0)
    ds_write_b128 v34, v[40:43]
    ds_write_b128 v34, v[44:47] offset:1040
    s_waitcnt lgkmcnt(0)
    """)
    a(f"""
    v_lshrrev_b32 v30, 4, v1            ; g
    v_and_b32 v31, 15, v1               ; i
    ; P2R = P2 + 8w*512 + l*16
    s_lshl_b32 s34, s18, 12
    s_add_u32 s34, s34, {WS_P2}
    v_lshlrev_b32 v{V_P2R}, 4, v1
    v_add_u32 v{V_P2R}, s34, v{V_P2R}
    v_lshrrev_b32 v32, 2, v1
    v_and_b32 v32, 7, v32
    v_mul_u32_u24 v32, 1040, v32
    v_lshrrev_b32 v33, 5, v1
    v_lshl_add_u32 v32, v33, 5, v32
    v_and_b32 v33, 3, v1
    v_lshl_add_u32 v32, v33, 3, v32
    s_lshl_b32 s34, s18, 8
    s_add_u32 s34, s34, {MEMB}
    v_add_u32 v{V_MEMW}, s34, v32
    v_min_u32 v32, 8, v31
    v_mul_u32_u24 v32, 1040, v32
    v_lshl_add_u32 v32, v30, 4, v32
    v_add_u32 v{V_MEMR}, {MEMB}, v32
    v_lshrrev_b32 v32, 2, v31
    v_lshlrev_b32 v32, 3, v32
    v_and_b32 v33, 3, v31
    v_add_u32 v32, v32, v33
    v_lshlrev_b32 v32, 13, v32
    v_lshl_add_u32 v32, v30, 4, v32
    s_lshl_b32 s34, s16, 8
    s_lshl_b32 s35, s18, 6
    s_add_u32 s34, s34, s35
    s_add_u32 s34, s34, {WS_K}
    v_add_u32 v{V_KX0}, s34, v32
    v_add_u32 v{V_KX1}, 32768, v{V_KX0}
    v_lshlrev_b32 v32, 6, v31
    v_lshl_add_u32 v32, v30, 4, v32
    s_lshl_b32 s34, s16, 13
    s_lshl_b32 s35, s18, 11
    s_add_u32 s34, s34, s35
    s_add_u32 s34, s34, {WS_VT}
    v_add_u32 v{V_VT}, s34, v32
    v_lshlrev_b32 v32, 8, v31
    v_lshl_add_u32 v32, v30, 4, v32
    s_lshl_b32 s34, s16, 11
    s_lshl_b32 s35, s18, 6
    s_add_u32 s34, s34, s35
    s_add_u32 s34, s34, {WS_KM}
    v_add_u32 v32, s34, v32
    v_mov_b32 v33, {OOB}
    v_cmp_gt_u32 vcc, 8, v31
    s_nop 1
    v_cndmask_b32 v{V_KM}, v33, v32, vcc
    ; P1W = P1 + ((8w*32 + h)*8 + i)*64 + 16g  (i<8)
    v_lshlrev_b32 v32, 6, v31
    v_lshl_add_u32 v32, v30, 4, v32
    s_lshl_b32 s34, s18, 17
    s_lshl_b32 s35, s16, 9
    s_add_u32 s34, s34, s35
    s_add_u32 s34, s34, {WS_P1}
    v_add_u32 v32, s34, v32
    v_cndmask_b32 v{V_P1W}, v33, v32, vcc
    v_lshlrev_b32 v32, 4, v31
    v_lshl_add_u32 v32, v30, 3, v32
    s_lshl_b32 s34, s16, 11
    s_lshl_b32 s35, s18, 9
    s_add_u32 s34, s34, s35
    s_add_u32 s34, s34, {WS_VMT}
    v_add_u32 v32, s34, v32
    v_cmp_gt_u32 vcc, 2, v30
    s_nop 1
    v_cndmask_b32 v{V_VM}, v33, v32, vcc
    s_mov_b64 s[58:59], vcc
    ; S exchange
    v_lshlrev_b32 v32, 4, v1
    s_mul_i32 s34, s18, 3072
    s_add_u32 s34, s34, {SB}
    v_add_u32 v{V_SW}, s34, v32
    """)
    for k, reg in ((1, V_SR1), (2, V_SR2), (3, V_SR3)):
        a(f"""
        s_add_u32 s34, s18, {k}
        s_and_b32 s34, s34, 3
        s_mul_i32 s34, s34, 3072
        s_add_u32 s34, s34, {SB}
        v_add_u32 v{reg}, s34, v32
        """)
    a(f"""
    s_lshl_b32 s34, s18, 10
    s_add_u32 s34, s34, {OB}
    v_add_u32 v{V_OW}, s34, v32
    v_add_u32 v{V_OR}, {OB}, v32
    ; WO0 = (4g + r)*1056 + 256w + 8c
    v_lshrrev_b32 v32, 2, v1
    v_and_b32 v32, 3, v32
    v_lshl_add_u32 v32, v30, 2, v32
    v_mul_u32_u24 v32, 1056, v32
    v_and_b32 v33, 3, v1
    v_lshl_add_u32 v32, v33, 3, v32
    s_lshl_b32 s34, s18, 8
    v_add_u32 v{V_WO0}, s34, v32
    v_add_u32 v{V_WO1}, {2*33792}, v{V_WO0}
    ; P1R = P1 + h*16384 + (l>>3)*512 + w*128 + (l&7)*16
    v_lshrrev_b32 v32, 3, v1
    v_lshlrev_b32 v32, 9, v32
    v_and_b32 v33, 7, v1
    v_lshl_add_u32 v32, v33, 4, v32
    s_lshl_b32 s34, s16, 14
    s_lshl_b32 s35, s18, 7
    s_add_u32 s34, s34, s35
    s_add_u32 s34, s34, {WS_P1}
    v_add_u32 v{V_P1R}, s34, v32
    ; P2W = P2 + h*512 + w*128 + (l&7)*16   (l<8)
    v_lshlrev_b32 v32, 4, v33
    s_lshl_b32 s34, s16, 9
    s_lshl_b32 s35, s18, 7
    s_add_u32 s34, s34, s35
    s_add_u32 s34, s34, {WS_P2}
    v_add_u32 v32, s34, v32
    v_mov_b32 v33, {OOB}
    v_cmp_gt_u32 vcc, 8, v1
    s_nop 1
    v_cndmask_b32 v{V_P2W}, v33, v32, vcc
    v_mov_b32 v{V_TAG1}, 0
    v_mov_b32 v{V_TAG2E}, 0
    v_mov_b32 v{V_TAG2W}, 1
    s_mov_b32 s67, 0x07060302
    s_mov_b32 s68, {f32hex((128 ** -0.5) * 1.4426950408889634)}
    s_mov_b32 s48, 4096
    s_mov_b32 s49, 8192
    s_mov_b32 s50, 12288
    s_mov_b32 s51, 0
    s_mov_b32 s53, 0
    s_mov_b32 s19, 0
    """)
    for nt in range(8):
        a(f"s_mov_b32 s{40+nt}, {nt*16384}")
    a(f"""
    buffer_load_dwordx4 {vr(KX,4)}, v{V_KX0}, s[4:7], s51 offen
    buffer_load_dwordx4 {vr(KX+4,4)}, v{V_KX1}, s[4:7], s51 offen
    buffer_load_dwordx4 {vr(VT,4)}, v{V_VT}, s[4:7], s51 offen
    buffer_load_dwordx4 {vr(VT+4,4)}, v{V_VT}, s[4:7], s51 offen offset:1024
    s_waitcnt vmcnt(0)
    s_barrier
    """)

def mem_pass(a, mats, first_issued=0):
    pass

def rec_step(a, last=False, entry_label=None):
    spin = a.newlabel("L_fail")
    lp = a.newlabel("L_pollA")
    a("s_mov_b32 s62, 0")
    a.label(lp)
    for i in range(4):
        a(f"buffer_load_dwordx4 {vr(PD+4*i,4)}, v{V_P2R}, s[4:7], 0 offen offset:{i*1024} sc1")
    a("s_waitcnt vmcnt(0)")
    a(f"v_xor_b32 v{TMP}, v{PD}, v{V_TAG2E}")
    a(f"v_xor_b32 v{TMP+1}, v{PD+1}, v{V_TAG2E}")
    for i in range(2, 16):
        a(f"v_xad_u32 v{TMP+(i&1)}, v{PD+i}, v{V_TAG2E}, v{TMP+(i&1)}")
    a(f"""
    v_add_u32 v{TMP}, v{TMP}, v{TMP+1}
    v_and_b32 v{TMP}, 0xffff, v{TMP}
    v_cmp_ne_u32 vcc, 0, v{TMP}
    s_add_u32 s62, s62, 1
    s_cmp_gt_u32 s62, 0x400000
    s_cbranch_scc1 L_rec_end
    s_cbranch_vccnz {lp}
    """)
    for i in range(4):
        a(f"v_perm_b32 v{PD+4*i}, v{PD+4*i+1}, v{PD+4*i}, s67")
        a(f"v_perm_b32 v{PD+4*i+1}, v{PD+4*i+3}, v{PD+4*i+2}, s67")
        a(f"ds_write_b64 v{V_MEMW}, {vr(PD+4*i,2)} offset:{i*64}")
    a("s_waitcnt lgkmcnt(0)")
    a("s_barrier")
    if entry_label:
        a.label(entry_label)
    for ks in range(8):
        a(f"ds_read_b128 {vr(RING+4*ks,4)}, v{V_MEMR} offset:{ks*64}")
    for ks in range(16):
        a(f"s_waitcnt lgkmcnt({min(7,15-ks)})")
        mf = vr(RING + 4 * (ks % 8), 4)
        for mat in range(2):
            for tile in range(2):
                acc = vr((QACC if mat == 0 else KACC) + 4 * tile, 4)
                w, _ = wfrag(mat, tile, ks)
                c = "0" if ks == 0 else acc
                a(f"v_mfma_f32_16x16x32_bf16 {acc}, {w}, {mf}, {c}")
        if ks + 8 < 16:
            a(f"ds_read_b128 {mf}, v{V_MEMR} offset:{(ks+8)*64}")
    for ks in range(8):
        a(f"ds_read_b128 {vr(RING+4*ks,4)}, v{V_MEMR} offset:{ks*64}")
    a.nop(2)
    for base in (QACC, KACC):
        a(f"v_cvt_pk_bf16_f32 v{base}, v{base}, v{base+1}")
        a(f"v_cvt_pk_bf16_f32 v{base+1}, v{base+2}, v{base+3}")
        a(f"v_cvt_pk_bf16_f32 v{base+2}, v{base+4}, v{base+5}")
        a(f"v_cvt_pk_bf16_f32 v{base+3}, v{base+6}, v{base+7}")
    a.nop(2)
    if not last:
        a(f"v_mfma_f32_16x16x32_bf16 {vr(ST,4)}, {vr(KACC,4)}, {vr(QACC,4)}, 0")
        a(f"v_mfma_f32_16x16x32_bf16 {vr(ST+4,4)}, {vr(KX,4)}, {vr(QACC,4)}, 0")
        a(f"v_mfma_f32_16x16x32_bf16 {vr(ST+8,4)}, {vr(KX+4,4)}, {vr(QACC,4)}, 0")
    a(f"buffer_store_dwordx4 {vr(KACC,4)}, v{V_KM}, s[4:7], s53 offen")
    def vpass(ks0, ks1):
        for ks in range(ks0, ks1):
            a(f"s_waitcnt lgkmcnt({vp_wait[ks]})")
            mf = vr(RING + 4 * (ks % 8), 4)
            for tile in range(2):
                acc = vr(VACC + 4 * tile, 4)
                w, _ = wfrag(2, tile, ks)
                c = "0" if ks == 0 else acc
                a(f"v_mfma_f32_16x16x32_bf16 {acc}, {mf}, {w}, {c}")
            if ks + 8 < 16:
                a(f"ds_read_b128 {mf}, v{V_MEMR} offset:{(ks+8)*64}")
    if last:
        vp_wait = {ks: min(7, 15 - ks) for ks in range(16)}
        vpass(0, 16)
        a.nop(8)
        for t in range(2):
            b = VACC + 4 * t
            a(f"v_cvt_pk_bf16_f32 v{b}, v{b}, v{b+1}")
            a(f"v_cvt_pk_bf16_f32 v{b+1}, v{b+2}, v{b+3}")
            a(f"buffer_store_dwordx2 {vr(b,2)}, v{V_VM}, s[4:7], s53 offen offset:{256*t}")
        a("s_waitcnt vmcnt(0)")
        return
    vp_wait = {ks: 7 for ks in range(4)}
    vpass(0, 4)
    for t in range(3):
        a(f"ds_write_b128 v{V_SW}, {vr(ST+4*t,4)} offset:{t*1024}")
    vp_wait = {4: 7 + 3, 5: 7 + 3, 6: 7 + 3, 7: 7 + 3}
    vp_wait = {4: 10, 5: 10, 6: 10, 7: 10}
    vpass(4, 8)
    a("s_waitcnt lgkmcnt(0)")
    a("s_barrier")
    dests = [PD, PD + 4, PD + 8, PD + 12, KX, KX + 4, QACC + 4, KACC + 4, TMP]
    n = 0
    for reg in (V_SR1, V_SR2, V_SR3):
        for t in range(3):
            a(f"ds_read_b128 {vr(dests[n],4)}, v{reg} offset:{t*1024}")
            n += 1
    vp_wait = {ks: 9 for ks in range(8, 16)}
    vpass(8, 16)
    a("s_waitcnt lgkmcnt(0)")
    n = 0
    for k in range(3):
        for t in range(3):
            for j in range(4):
                a(f"v_add_f32 v{ST+4*t+j}, v{ST+4*t+j}, v{dests[n]+j}")
            n += 1
    M0, M1 = TMP, TMP + 1
    a(f"v_mov_b32 v{M1}, 0xf149f2ca")
    for j in range(4):
        a(f"v_cndmask_b32 v{ST+j}, v{M1}, v{ST+j}, s[58:59]")
    a(f"v_max3_f32 v{M0}, v{ST}, v{ST+1}, v{ST+2}")
    for j in range(3, 11, 2):
        a(f"v_max3_f32 v{M0}, v{M0}, v{ST+j}, v{ST+j+1}")
    a(f"v_max_f32 v{M0}, v{M0}, v{ST+11}")
    def xlane(op):
        a(f"""
        v_mov_b32 v{M1}, v{M0}
        s_nop 1
        v_permlane16_swap_b32 v{M0}, v{M1}
        {op} v{M0}, v{M0}, v{M1}
        v_mov_b32 v{M1}, v{M0}
        s_nop 1
        v_permlane32_swap_b32 v{M0}, v{M1}
        {op} v{M0}, v{M0}, v{M1}
        """)
    xlane("v_max_f32")
    a(f"v_mul_f32 v{M0}, s68, v{M0}")
    for j in range(12):
        a(f"v_fma_f32 v{ST+j}, v{ST+j}, s68, -v{M0}")
    for j in range(12):
        a(f"v_exp_f32 v{ST+j}, v{ST+j}")
    a.nop(1)
    a(f"v_add_f32 v{M0}, v{ST}, v{ST+1}")
    for j in range(2, 12):
        a(f"v_add_f32 v{M0}, v{M0}, v{ST+j}")
    xlane("v_add_f32")
    a(f"v_rcp_f32 v{M0}, v{M0}")
    a.nop(1)
    for j in range(12):
        a(f"v_mul_f32 v{ST+j}, v{ST+j}, v{M0}")
    a(f"""
    v_cvt_pk_bf16_f32 v{ST}, v{ST}, v{ST+1}
    v_cvt_pk_bf16_f32 v{ST+1}, v{ST+2}, v{ST+3}
    v_mov_b32 v{ST+2}, 0
    v_mov_b32 v{ST+3}, 0
    v_cvt_pk_bf16_f32 v{ST+4}, v{ST+4}, v{ST+5}
    v_cvt_pk_bf16_f32 v{ST+5}, v{ST+6}, v{ST+7}
    v_cvt_pk_bf16_f32 v{ST+6}, v{ST+8}, v{ST+9}
    v_cvt_pk_bf16_f32 v{ST+7}, v{ST+10}, v{ST+11}
    """)
    for t in range(2):
        b = VACC + 4 * t
        a(f"v_cvt_pk_bf16_f32 v{b}, v{b}, v{b+1}")
        a(f"v_cvt_pk_bf16_f32 v{b+1}, v{b+2}, v{b+3}")
        a(f"v_mov_b32 v{b+2}, 0")
        a(f"v_mov_b32 v{b+3}, 0")
    a.nop(2)
    OA, OBb = QACC, KACC
    a(f"v_mfma_f32_16x16x32_bf16 {vr(OA,4)}, {vr(VT,4)}, {vr(ST+4,4)}, 0")
    a(f"v_mfma_f32_16x16x32_bf16 {vr(OBb,4)}, {vr(VT+4,4)}, {vr(ST+4,4)}, 0")
    a(f"v_mfma_f32_16x16x32_bf16 {vr(OA,4)}, {vr(VACC,4)}, {vr(ST,4)}, {vr(OA,4)}")
    a(f"v_mfma_f32_16x16x32_bf16 {vr(OBb,4)}, {vr(VACC+4,4)}, {vr(ST,4)}, {vr(OBb,4)}")
    for t in range(2):
        a(f"buffer_store_dwordx2 {vr(VACC+4*t,2)}, v{V_VM}, s[4:7], s53 offen offset:{256*t}")
    a(f"""
    s_add_u32 s51, s51, 262144
    s_add_u32 s53, s53, 65536
    buffer_load_dwordx4 {vr(KX,4)}, v{V_KX0}, s[4:7], s51 offen
    buffer_load_dwordx4 {vr(KX+4,4)}, v{V_KX1}, s[4:7], s51 offen
    buffer_load_dwordx4 {vr(VT,4)}, v{V_VT}, s[4:7], s51 offen
    buffer_load_dwordx4 {vr(VT+4,4)}, v{V_VT}, s[4:7], s51 offen offset:1024
    """)
    a.nop(2)
    a(f"""
    v_cvt_pk_bf16_f32 v{OA}, v{OA}, v{OA+1}
    v_cvt_pk_bf16_f32 v{OA+1}, v{OA+2}, v{OA+3}
    v_cvt_pk_bf16_f32 v{OA+2}, v{OBb}, v{OBb+1}
    v_cvt_pk_bf16_f32 v{OA+3}, v{OBb+2}, v{OBb+3}
    ds_write_b128 v{V_OW}, {vr(OA,4)}
    s_waitcnt lgkmcnt(0)
    s_barrier
    """)
    for k in range(4):
        a(f"ds_read_b128 {vr(PD+4*k,4)}, v{V_OR} offset:{k*1024}")
    wb = [QACC + 4, KACC + 4, ST, ST + 4, ST + 8, KACC]
    NB = len(wb)
    seq = [(nt, ks) for nt in range(8) for ks in range(4)]
    def wo_read(idx):
        nt, ks = seq[idx]
        b = wb[idx % NB]
        addr = V_WO0 if ks < 2 else V_WO1
        off = (ks % 2) * 33792 + nt * 32
        a(f"ds_read_b64_tr_b16 {vr(b,2)}, v{addr} offset:{off}")
        a(f"ds_read_b64_tr_b16 {vr(b+2,2)}, v{addr} offset:{off+16896}")
    for idx in range(NB - 1):
        wo_read(idx)
    def p1_store(nt):
        acc = RING + 4 * nt
        for j in range(4):
            a(f"v_and_or_b32 v{acc+j}, v{acc+j}, -2, v{V_TAG1}")
        stores_modal(a, [f"buffer_store_dwordx4 {vr(acc,4)}, v{V_P1W}, s[4:7], s{40+nt} offen"])
    for idx, (nt, ks) in enumerate(seq):
        rem = min(NB - 2, 31 - idx)
        a(f"s_waitcnt lgkmcnt({2*rem})")
        acc = vr(RING + 4 * nt, 4)
        c = "0" if ks == 0 else acc
        a(f"v_mfma_f32_16x16x32_bf16 {acc}, {vr(wb[idx%NB],4)}, {vr(PD+4*ks,4)}, {c}")
        if idx + NB - 1 < 32:
            wo_read(idx + NB - 1)
        if ks == 3 and nt >= 2:
            p1_store(nt - 2)
    a.nop(4)
    p1_store(6)
    a.nop(4)
    p1_store(7)
    lp = a.newlabel("L_pollG")
    a("s_mov_b32 s62, 0")
    a.label(lp)
    a(f"buffer_load_dwordx4 {vr(PD,4)}, v{V_P1R}, s[4:7], 0 offen sc1")
    for i in range(1, 4):
        a(f"buffer_load_dwordx4 {vr(PD+4*i,4)}, v{V_P1R}, s[4:7], s{47+i} offen sc1")
    a("s_waitcnt vmcnt(0)")
    a(f"v_or3_b32 v{TMP}, v{PD}, v{PD+1}, v{PD+2}")
    for i in range(3, 15, 2):
        a(f"v_or3_b32 v{TMP}, v{TMP}, v{PD+i}, v{PD+i+1}")
    a(f"v_or_b32 v{TMP}, v{TMP}, v{PD+15}")
    a(f"v_and_b32 v{TMP+1}, v{PD}, v{PD+1}")
    a(f"v_and_b32 v{TMP+2}, v{PD+2}, v{PD+3}")
    for i in range(4, 16):
        a(f"v_and_b32 v{TMP+1+(i&1)}, v{TMP+1+(i&1)}, v{PD+i}")
    a(f"""
    v_and_b32 v{TMP+1}, v{TMP+1}, v{TMP+2}
    v_xor_b32 v{TMP}, v{TMP}, v{V_TAG1}
    v_xor_b32 v{TMP+1}, v{TMP+1}, v{V_TAG1}
    v_or_b32 v{TMP}, v{TMP}, v{TMP+1}
    v_and_b32 v{TMP}, 1, v{TMP}
    v_cmp_ne_u32 vcc, 0, v{TMP}
    s_add_u32 s62, s62, 1
    s_cmp_gt_u32 s62, 0x400000
    s_cbranch_scc1 L_rec_end
    s_cbranch_vccnz {lp}
    """)
    for j in range(4):
        a(f"v_add_f32 v{PD+j}, v{PD+j}, v{PD+4+j}")
        a(f"v_add_f32 v{PD+8+j}, v{PD+8+j}, v{PD+12+j}")
    for j in range(4):
        a(f"v_add_f32 v{PD+j}, v{PD+j}, v{PD+8+j}")
    a.nop(2)
    for j in range(4):
        a(f"v_add_f32_dpp v{PD+j}, v{PD+j}, v{PD+j} row_ror:8 row_mask:0xf bank_mask:0xf")
    for sw in ("v_permlane16_swap_b32", "v_permlane32_swap_b32"):
        for j in range(4):
            a(f"v_mov_b32 v{PD+4+j}, v{PD+j}")
        a.nop(2)
        for j in range(4):
            a(f"{sw} v{PD+j}, v{PD+4+j}")
        for j in range(4):
            a(f"v_add_f32 v{PD+j}, v{PD+j}, v{PD+4+j}")
    for j in range(4):
        a(f"v_cvt_pk_bf16_f32 v{PD+j}, v{PD+j}, v{PD+j}")
    for j in range(4):
        a(f"v_lshl_or_b32 v{PD+j}, v{PD+j}, 16, v{V_TAG2W}")
    stores_modal(a, [f"buffer_store_dwordx4 {vr(PD,4)}, v{V_P2W}, s[4:7], 0 offen"])
    a(f"""
    v_xor_b32 v{V_TAG1}, 1, v{V_TAG1}
    v_add_u32 v{V_TAG2E}, 1, v{V_TAG2E}
    v_add_u32 v{V_TAG2W}, 1, v{V_TAG2W}
    """)

def gen_rec_kernel(a, name):
    a.lines.append(kernel_header(name))
    a(f"""
    s_cmp_ge_u32 s2, 256
    s_cbranch_scc1 L_rec_end
    s_load_dwordx2 s[20:21], s[0:1], {KA['mem0']}
    s_load_dwordx2 s[22:23], s[0:1], {KA['Wq']}
    s_load_dwordx2 s[24:25], s[0:1], {KA['Wk']}
    s_load_dwordx2 s[26:27], s[0:1], {KA['Wv']}
    s_load_dwordx2 s[28:29], s[0:1], {KA['Wo']}
    s_load_dwordx2 s[30:31], s[0:1], {KA['dbg']}
    s_load_dwordx2 s[32:33], s[0:1], {KA['ws']}
    v_and_b32 v1, 63, v0
    v_readfirstlane_b32 s18, v0
    s_lshr_b32 s18, s18, 6
    s_waitcnt lgkmcnt(0)
    s_mov_b32 s4, s32
    s_mov_b32 s5, s33
    s_mov_b32 s6, {WS_SIZE}
    s_mov_b32 s7, 0x00020000
    s_mov_b32 s8, s30
    s_mov_b32 s9, s31
    s_mov_b32 s10, 256
    s_mov_b32 s11, 0x00020000
    """)
    role_select(a, 256)
    a("""
    s_cmp_lt_i32 s16, 0
    s_cbranch_scc1 L_rec_end
    """)
    rec_setup(a)
    a("s_branch L_rec_entry")
    a.label("L_rec_loop")
    rec_step(a, last=False, entry_label="L_rec_entry")
    a("""
    s_add_u32 s19, s19, 1
    s_cmp_lt_u32 s19, 63
    s_cbranch_scc1 L_rec_loop
    """)
    rec_step(a, last=True)
    a.label("L_rec_end")
    a("s_endpgm")

if __name__ == "__main__":
    a = Asm()
    a.lines.append("; @launch kernel=rec_kernel grid=(256,1,1) block=(256,1,1) lds=163840")
    a.lines.append('.amdgcn_target "amdgcn-amd-amdhsa--gfx950"')
    a.lines.append(".text")
    gen_rec_kernel(a, "rec_kernel")
    a.lines.append('.section .rodata,"a"')
    a.lines.append(".p2align 6")
    a.lines.append(kernel_desc("rec_kernel"))
    open("rec_test.s", "w").write(a.text())
```

```python
from asmlib import *
from kernels import *
from attn import gen_attn
import rec
import sys
a = Asm()
hdr = open("sequential_preLN__memory_aug_recurrent_mem_tr__glu_gated_geglu__prompt.s.ref").read().split("\n")
for l in hdr:
    if l.startswith("; @launch") or l.startswith("; Override") or l.startswith("; grid="): continue
    if not l.startswith(";"): break
    a.lines.append(l)
L = [("pre_kernel", 512, 0), ("qkv_kernel", 1536, 131072), ("rec_kernel", 256, 163840), ("attn_kernel", 512, 0),
     ("oproj_kernel", 128, 98304), ("ln2_kernel", 512, 0), ("gateup_kernel", 352, 131072), ("down_kernel", 128, 98304)]
for n, g, lds in L:
    a.lines.append(f"; @launch kernel={n} grid=({g},1,1) block=(256,1,1) lds={lds}")
a.lines.append('.amdgcn_target "amdgcn-amd-amdhsa--gfx950"')
a.lines.append(".text")
gen_pre(a, "pre_kernel"); gen_qkv(a, "qkv_kernel"); rec.gen_rec_kernel(a, "rec_kernel"); gen_attn(a, "attn_kernel")
gen_oproj(a, "oproj_kernel"); gen_ln2(a, "ln2_kernel"); gen_gateup(a, "gateup_kernel"); gen_down(a, "down_kernel")
a.lines.append('.section .rodata,"a"')
a.lines.append(".p2align 6")
a.lines.append(kernel_desc("pre_kernel", 32, 32, 80))
a.lines.append(kernel_desc("qkv_kernel", 128, 64, 80))
a.lines.append(kernel_desc("rec_kernel"))
a.lines.append(kernel_desc("attn_kernel", 200, 200, 80))
a.lines.append(kernel_desc("oproj_kernel", 128, 64, 80))
a.lines.append(kernel_desc("ln2_kernel", 32, 32, 80))
a.lines.append(kernel_desc("gateup_kernel", 128, 64, 80))
a.lines.append(kernel_desc("down_kernel", 128, 64, 80))
out = sys.argv[1] if len(sys.argv) > 1 else "full1.s"
open(out, "w").write(a.text())
```
